```python
import torch

def _softmax(x, axis=-1):
    return torch.softmax(x, dim=axis)
def _gelu(x):
    return torch.nn.functional.gelu(x, approximate="tanh")
def _silu(x):
    return torch.nn.functional.silu(x)
def _sigmoid(x):
    return torch.sigmoid(x)
def _layernorm(x, axis=-1, eps=1e-5):
    m = x.mean(dim=axis, keepdim=True)
    v = x.var(dim=axis, keepdim=True, unbiased=False)
    return (x - m) / torch.sqrt(v + eps)
def _scatter_add(tgt, idx, src, axis=0):
    return tgt.clone().index_add_(axis, idx, src)
def _segment_sum(src, seg, n):
    out = torch.zeros((n,) + src.shape[1:], dtype=src.dtype)
    return out.index_add_(0, seg, src)
def _pad(x, pw):
    flat = tuple(v for pair in reversed(pw) for v in pair)
    return torch.nn.functional.pad(x, flat)

kernel_name = 'parallel_sum__compressed_kv_cla__moe_arch_mod__prompt'

def setup_inputs():

    _w = (lambda a: (lambda t: t.to(torch.bfloat16) if t.is_floating_point() else t)(torch.as_tensor(a)))
    def _A_setup():
        B, H, Sq, Sk, D, M = 1, 32, 2048, 2048, 128, 512
        Dc = 4 * D
        return {
            "x": _w((lambda *s: torch.randn(*s, dtype=torch.bfloat16) * 0.05)(B, Sq, M)),
            "c_kv": _w((lambda *s: torch.randn(*s, dtype=torch.bfloat16) * 1.6)(B, Sk, Dc)),
            "w_q": _w((lambda *s: torch.randn(*s, dtype=torch.bfloat16) * 0.8)(M, H, D) * (M ** -0.5)),
            "w_uk": _w((lambda *s: torch.randn(*s, dtype=torch.bfloat16) * 0.8)(Dc, H, D) * (Dc ** -0.5)),
            "w_uv": _w((lambda *s: torch.randn(*s, dtype=torch.bfloat16) * 1.6)(Dc, H, D) * (Dc ** -0.5)),
            "w_o": _w((lambda *s: torch.randn(*s, dtype=torch.bfloat16) * 1.6)(H, D, M) * ((H * D) ** -0.5)),
        }
    _A_in = _A_setup()

    def _B_setup():
        B, S, D, F, C = 1, 2048, 512, 1376, 8
        return {
            "x": _w((lambda *s: torch.randn(*s, dtype=torch.bfloat16) * 0.05)(B, S, D)),
            "w_r": _w((lambda *s: torch.randn(*s, dtype=torch.bfloat16) * 0.05)(D)),
            "w_gate": _w((lambda *s: torch.randn(*s, dtype=torch.bfloat16) * 0.05)(D, F)),
            "w_up": _w((lambda *s: torch.randn(*s, dtype=torch.bfloat16) * 0.05)(D, F)),
            "w_down": _w((lambda *s: torch.randn(*s, dtype=torch.bfloat16) * 0.05)(F, D)),
        }
    _B_in = _B_setup()

    return {
        "A_x": _A_in["x"],
        "A_c_kv": _A_in["c_kv"],
        "A_w_q": _A_in["w_q"],
        "A_w_uk": _A_in["w_uk"],
        "A_w_uv": _A_in["w_uv"],
        "A_w_o": _A_in["w_o"],
        "B_x": _B_in["x"],
        "B_w_r": _B_in["w_r"],
        "B_w_gate": _B_in["w_gate"],
        "B_w_up": _B_in["w_up"],
        "B_w_down": _B_in["w_down"],
    }

def reference(A_x, A_c_kv, A_w_q, A_w_uk, A_w_uv, A_w_o, B_x, B_w_r, B_w_gate, B_w_up, B_w_down):
    def _A_ref(x, c_kv, w_q, w_uk, w_uv, w_o):
        B, Sq, M = x.shape[0], x.shape[1], x.shape[2]
        Sk = c_kv.shape[1]
        H, D = w_q.shape[1], w_q.shape[2]
        q = torch.einsum("bqm,mhd->bhqd", x, w_q)
        k = torch.einsum("bkc,chd->bhkd", c_kv, w_uk)
        v = torch.einsum("bkc,chd->bhkd", c_kv, w_uv)
        scores = torch.einsum("bhqd,bhkd->bhqk", q, k) * (D ** -0.5)
        off = Sk - Sq
        qi = torch.arange(Sq)[:, None]
        kj = torch.arange(Sk)[None, :]
        cmask = kj <= (qi + off)
        scores = torch.where(cmask[None, None], scores, -1e9)
        p = _softmax(scores, axis=-1)
        ctx = torch.einsum("bhqk,bhkd->bhqd", p, v)
        return torch.einsum("bhqd,hdm->bqm", ctx, w_o)

    def _B_ref(x, w_r, w_gate, w_up, w_down):
        B, S, D = x.shape
        C = 8
        r = x @ w_r
        idx = torch.argsort(-r, axis=-1)[:, :C]
        idx_e = (lambda x, n, axis: torch.repeat_interleave(x, n, dim=axis))(idx.reshape(B, C, 1), D, axis=2)
        x_sel = (lambda x, i, axis: torch.take_along_dim(x, i, dim=axis))(x, idx_e, axis=1)
        g = _silu(x_sel @ w_gate)
        u = x_sel @ w_up
        y = (g * u) @ w_down
        r_sel = _sigmoid((lambda x, i, axis: torch.take_along_dim(x, i, dim=axis))(r, idx, axis=1))
        y = y * r_sel.reshape(B, C, 1)
        b_off = (torch.arange(B) * S).reshape(B, 1)
        flat_idx = (idx + b_off).reshape(B * C)
        zero = (x * 0.0).reshape(B * S, D)
        upd = _scatter_add(zero, flat_idx, y.reshape(B * C, D), axis=0)
        return x + upd.reshape(B, S, D)

    x = A_x
    xn = _layernorm(x, axis=-1)
    return x + _A_ref(xn, A_c_kv, A_w_q, A_w_uk, A_w_uv, A_w_o) + _B_ref(xn, B_w_r, B_w_gate, B_w_up, B_w_down)
```

```python
import re

def vr(i, n=1):
    return f'v{i}' if n == 1 else f'v[{i}:{i+n-1}]'
def ar(i, n=1):
    return f'a{i}' if n == 1 else f'a[{i}:{i+n-1}]'
def sr(i, n=1):
    return f's{i}' if n == 1 else f's[{i}:{i+n-1}]'

class Asm:
    def __init__(self):
        self.lines = []
        self.vm = []
    def e(self, s, tag=None):
        if isinstance(s, (list, tuple)):
            for x in s: self.e(x)
            return
        if isinstance(s, Item):
            s.emit(self); return
        self.lines.append('  ' + s)
        op = s.split()[0]
        if op.startswith('buffer_') or op.startswith('global_'):
            self.vm.append(tag)
    def label(self, name):
        self.lines.append(name + ':')
    def raw(self, s):
        self.lines.append(s)
    def c(self, s):
        self.lines.append('  ; ' + s)
    def vm_count_after(self, tags):
        if not isinstance(tags, (list, tuple, set)): tags = [tags]
        last = -1
        for i, t in enumerate(self.vm):
            if t in tags: last = i
        assert last >= 0, f'tag {tags} never issued'
        return len(self.vm) - 1 - last
    def wait_vm(self, tags, extra=''):
        n = self.vm_count_after(tags)
        n = min(n, 63)
        self.e(f's_waitcnt vmcnt({n}){extra}')
    def text(self):
        return '\n'.join(self.lines) + '\n'

class Item:
    def __init__(self, fn): self.fn = fn
    def emit(self, a): self.fn(a)
def T(s, tag):
    return Item(lambda a: a.e(s, tag))
def WVM(tags, extra=''):
    return Item(lambda a: a.wait_vm(tags, extra))

def srd(a, d, base_lo, base_hi, nbytes, off=0):
    if off:
        a.e(f's_add_u32 s{d}, s{base_lo}, {off:#x}')
        a.e(f's_addc_u32 s{d+1}, s{base_hi}, 0')
        a.e(f's_and_b32 s{d+1}, s{d+1}, 0xffff')
    else:
        a.e(f's_mov_b32 s{d}, s{base_lo}')
        a.e(f's_and_b32 s{d+1}, s{base_hi}, 0xffff')
    a.e(f's_mov_b32 s{d+2}, {nbytes:#x}')
    a.e(f's_mov_b32 s{d+3}, 0x20000')

def desc(name, nv, acc_off, nsgpr=102):
    return f'''.p2align 6
.amdhsa_kernel {name}
  .amdhsa_next_free_vgpr {nv}
  .amdhsa_next_free_sgpr {nsgpr}
  .amdhsa_accum_offset {acc_off}
  .amdhsa_group_segment_fixed_size 0
  .amdhsa_kernarg_size 112
  .amdhsa_user_sgpr_count 2
  .amdhsa_user_sgpr_kernarg_segment_ptr 1
  .amdhsa_system_sgpr_workgroup_id_x 1
.end_amdhsa_kernel
'''

_reg = re.compile(r'\b([vas])(\d+)\b|\b([vas])\[(\d+):(\d+)\]|\b(vcc|exec|m0|scc)\b')
def regs_of(op):
    out = set()
    for m in _reg.finditer(op):
        if m.group(1): out.add((m.group(1), int(m.group(2))))
        elif m.group(3):
            for i in range(int(m.group(4)), int(m.group(5)) + 1): out.add((m.group(3), i))
        else: out.add((m.group(6), 0))
    return out
TRANS = ('v_exp_f32', 'v_log_f32', 'v_rcp_f32', 'v_rsq_f32', 'v_sqrt_f32')
def parse(line):
    s = line.split(';')[0].strip()
    if not s or s.endswith(':') or s.startswith('.'): return None
    parts = s.split(None, 1)
    op = parts[0]
    ops = [x.strip() for x in parts[1].split(',')] if len(parts) > 1 else []
    d = dict(op=op, text=s, w=set(), r=set(), cls='other', ws=1)
    if op == 's_nop': d['ws'] = int(ops[0], 0) + 1; return d
    if op.startswith('v_mfma'):
        d['cls'] = 'mfma'; d['w'] = regs_of(ops[0]); d['A'] = regs_of(ops[1]); d['B'] = regs_of(ops[2]); d['C'] = regs_of(ops[3])
        d['r'] = d['A'] | d['B'] | d['C']; d['passes'] = 8 if '32x32x16' in op else 4
        d['Cname'] = ops[3].split()[0]; d['Dname'] = ops[0]
    elif op.startswith('v_cmp'):
        d['cls'] = 'valu'; d['w'] = regs_of(ops[0]); d['r'] = set().union(*[regs_of(x) for x in ops[1:]])
    elif op.startswith('v_permlane'):
        d['cls'] = 'valu'; d['perm'] = True; d['w'] = regs_of(ops[0]) | regs_of(ops[1]); d['r'] = set(d['w'])
    elif op.startswith('v_'):
        d['cls'] = 'valu'; d['w'] = regs_of(ops[0]); d['r'] = set().union(*[regs_of(x) for x in ops[1:]]) if len(ops) > 1 else set()
        if op.startswith(('v_fmac', 'v_dot2c')) or 'dpp' in op: d['r'] |= d['w']
        if op.startswith('v_cndmask') and len(ops) == 3: d['r'].add(('vcc', 0))
        if 'dpp' in op or 'row_' in s or 'quad_perm' in s: d['dpp'] = True
        if op.startswith(TRANS): d['trans'] = True
        if op.startswith(('v_readlane', 'v_readfirstlane')): d['rl'] = True
    elif op.startswith(('buffer_', 'global_')):
        d['cls'] = 'vmem'
        allr = set().union(*[regs_of(x) for x in ops]) if ops else set()
        if ' lds' in s: d['r'] = allr | {('m0', 0)}; d['lds'] = True
        elif 'store' in op:
            d['r'] = allr
            dat = ops[0] if op.startswith('buffer_') else ops[1]
            if 'x4' in op or 'x3' in op: d['wide'] = regs_of(dat)
        elif 'atomic' in op: d['r'] = allr
        elif 'load' in op: d['w'] = regs_of(ops[0]); d['r'] = set().union(*[regs_of(x) for x in ops[1:]])
    elif op.startswith('ds_'):
        d['cls'] = 'ds'
        if 'read' in op or 'permute' in op or 'swizzle' in op: d['w'] = regs_of(ops[0]); d['r'] = set().union(*[regs_of(x) for x in ops[1:]])
        else: d['r'] = set().union(*[regs_of(x) for x in ops])
    elif op.startswith('s_'):
        d['cls'] = 'salu'
        if op.startswith(('s_cmp', 's_cbranch', 's_branch', 's_waitcnt', 's_barrier', 's_endpgm', 's_setprio', 's_sleep')):
            d['r'] = set().union(*[regs_of(x) for x in ops]) if ops and not op.startswith('s_waitcnt') else set()
        else:
            d['w'] = regs_of(ops[0]); d['r'] = set().union(*[regs_of(x) for x in ops[1:]]) if len(ops) > 1 else set()
            if 'saveexec' in op: d['w'].add(('exec', 0))
    return d

def check_hazards(text, name=''):
    ins = [x for x in (parse(l) for l in text.split('\n')) if x]
    errs = []
    for j, c in enumerate(ins):
        dist = 0
        for i in range(j - 1, max(-1, j - 24), -1):
            p = ins[i]
            need = 0
            if p['op'] in ('s_branch', 's_endpgm'): break
            vw = {r for r in p['w'] if r[0] in 'va'}
            sw = {r for r in p['w'] if r[0] in ('s', 'vcc')}
            if p['cls'] == 'valu':
                if c['cls'] == 'mfma' and vw & c['r']: need = max(need, 2)
                if c.get('perm') and vw & c['r']: need = max(need, 2)
                if c.get('dpp') and vw & c['r']: need = max(need, 2)
                if c.get('rl') and vw & c['r']: need = max(need, 1)
                if p.get('trans') and c['cls'] in ('valu',) and not c.get('trans') and vw & c['r']: need = max(need, 1)
                if c['cls'] == 'vmem' and sw & c['r']: need = max(need, 5)
                if c['cls'] == 'valu' and sw & c['r']: need = max(need, 4 if c.get('rl') else 2)
            if p['cls'] == 'mfma':
                ps = p['passes']
                if c['cls'] == 'mfma':
                    if vw & (c['A'] | c['B']): need = max(need, 12 if ps == 8 else 8)
                    if vw & c['C'] and not (c['Cname'] == p['Dname'] and c['passes'] == ps): need = max(need, 10 if ps == 8 else 6)
                    if vw & c['w'] and not (c['Cname'] == p['Dname']): need = max(need, 10 if ps == 8 else 6)
                elif c['cls'] in ('valu', 'vmem', 'ds'):
                    if vw & (c['r'] | c['w']): need = max(need, 12 if ps == 8 else 8)
                    if c['cls'] == 'valu' and p['C'] & c['w']: need = max(need, 7 if ps == 8 else 3)
            if p['cls'] == 'salu' and ('m0', 0) in p['w'] and c.get('lds'): need = max(need, 1)
            if p.get('wide') and p['wide'] & c['w']: need = max(need, 2)
            if need > dist:
                errs.append(f'{name}: need {need} have {dist}: [{p["text"]}] -> [{c["text"]}]')
            dist += p['ws']
    return errs
```

```python
from asmlib import *
import math, struct
WS_XNF = 0x000000
WS_XN  = 0x200000
WS_KEY = 0x400000
WS_TOP = 0x410000
WS_UPD = 0x420000
WS_YP  = 0x500000
WS_SMALL = 0x800000
WS_KV  = 0x1000000
WS_CTX = 0x3000000
KA = dict(x=0, ckv=8, wq=16, wuk=24, wuv=32, wo=40, bx=48, wr=56, wg=64, wu=72, wd=80, out=88, dbg=96, ws=104)
def f32bits(x): return struct.unpack('<I', struct.pack('<f', x))[0]
SCALE = math.log2(math.e) / math.sqrt(128.0)
MFMA = 'v_mfma_f32_32x32x16_bf16'

def wave_sum(a, v, nopfill=True):
    vs = v if isinstance(v, list) else [v]
    steps = ['row_shr:1 row_mask:0xf bank_mask:0xf bound_ctrl:0', 'row_shr:2 row_mask:0xf bank_mask:0xf bound_ctrl:0',
             'row_shr:4 row_mask:0xf bank_mask:0xf bound_ctrl:0', 'row_shr:8 row_mask:0xf bank_mask:0xf bound_ctrl:0',
             'row_bcast:15 row_mask:0xa bank_mask:0xf', 'row_bcast:31 row_mask:0xc bank_mask:0xf']
    for st in steps:
        a.e(f's_nop {max(0, 2 - len(vs))}')
        for x in vs: a.e(f'v_add_f32_dpp v{x}, v{x}, v{x} {st}')
    a.e('s_nop 0')
```

```python
import sys, importlib
from gen_common import *
HDR = open('parallel_sum__compressed_kv_cla__moe_arch_mod__prompt.s.ref').read().split('; Override launch')[0]
def build(parts, path):
    launches = [p[2] for p in parts]
    s = HDR + '\n'.join(launches) + '\n.amdgcn_target "amdgcn-amd-amdhsa--gfx950"\n.text\n'
    seen = set()
    for t, d, l in parts:
        if d in seen: continue
        s += t + '\n'
    s += '.section .rodata,"a"\n'
    for t, d, l in parts:
        if d in seen: continue
        seen.add(d); s += d
    open(path, 'w').write(s)
    for t, d, l in parts:
        errs = check_hazards(t, l.split('kernel=')[1].split()[0])
        if errs: print('\n'.join(errs[:30])); print(len(errs), 'HAZARDS')
if __name__ == '__main__':
    which = sys.argv[1].split(',')
    out = sys.argv[2]
    opts = dict(kv.split('=') for kv in sys.argv[3:])
    parts = []
    for w in which:
        m = importlib.import_module('gen_' + w)
        parts.append(getattr(m, 'gen_' + w)(**{k[len(w)+1:]: v for k, v in opts.items() if k.startswith(w + '.')}))
    build(parts, out)
```
